```python
import torch

def _softmax(x, axis=-1):
    return torch.softmax(x, dim=axis)

def _gelu(x):
    return torch.nn.functional.gelu(x, approximate='tanh')

def _silu(x):
    return torch.nn.functional.silu(x)

def _sigmoid(x):
    return torch.sigmoid(x)

def _layernorm(x, axis=-1, eps=1e-05):
    m = x.mean(dim=axis, keepdim=True)
    v = x.var(dim=axis, keepdim=True, unbiased=False)
    return (x - m) / torch.sqrt(v + eps)

def _scatter_add(tgt, idx, src, axis=0):
    return tgt.clone().index_add_(axis, idx, src)

def _segment_sum(src, seg, n):
    out = torch.zeros((n,) + src.shape[1:], dtype=src.dtype)
    return out.index_add_(0, seg, src)

def _pad(x, pw):
    flat = tuple((v for pair in reversed(pw) for v in pair))
    return torch.nn.functional.pad(x, flat)
kernel_name = 'standalone__tree_speculative_verify_tree_attention_over_candidate_token_tree__sampling'

def setup_inputs():

    _w = lambda a: (lambda t: t.to(torch.bfloat16) if t.is_floating_point() else t)(torch.as_tensor(a))
    B, Hq, Hkv, T, C, D = (16, 32, 4, 1, 4096, 128)
    tree_mask = torch.zeros((B, T, T), dtype=float)
    for b in range(B):
        parent = torch.zeros(T, dtype=torch.int64)
        for i in range(1, T):
            parent[i] = int(torch.randint(0, i, (1,)).item())
        for i in range(T):
            j = i
            tree_mask[b, i, j] = 1.0
            while j > 0:
                j = parent[j]
                tree_mask[b, i, j] = 1.0
    return {'q': _w((lambda *s: torch.randn(*s, dtype=torch.bfloat16) * 0.8)(B, Hq, T, D)), 'k_cache': _w((lambda *s: torch.randn(*s, dtype=torch.bfloat16) * 0.8)(B, Hkv, C, D)), 'v_cache': _w((lambda *s: torch.randn(*s, dtype=torch.bfloat16) * 0.05)(B, Hkv, C, D)), 'k_tree': _w((lambda *s: torch.randn(*s, dtype=torch.bfloat16) * 0.8)(B, Hkv, T, D)), 'v_tree': _w((lambda *s: torch.randn(*s, dtype=torch.bfloat16) * 0.05)(B, Hkv, T, D)), 'tree_mask': _w(tree_mask)}

def reference(q, k_cache, v_cache, k_tree, v_tree, tree_mask):
    B, Hq, T, D = q.shape
    Hkv, C = (k_cache.shape[1], k_cache.shape[2])
    rep = Hq // Hkv
    kc = (lambda x, n, axis: torch.repeat_interleave(x, n, dim=axis))(k_cache, rep, axis=1)
    vc = (lambda x, n, axis: torch.repeat_interleave(x, n, dim=axis))(v_cache, rep, axis=1)
    kt = (lambda x, n, axis: torch.repeat_interleave(x, n, dim=axis))(k_tree, rep, axis=1)
    vt = (lambda x, n, axis: torch.repeat_interleave(x, n, dim=axis))(v_tree, rep, axis=1)
    k = torch.concatenate([kc, kt], axis=2)
    v = torch.concatenate([vc, vt], axis=2)
    scale = D ** (-0.5)
    scores = torch.einsum('bhqd,bhkd->bhqk', q, k) * scale
    ctx_mask = torch.ones((B, 1, T, C), dtype=scores.dtype)
    tm = tree_mask[:, None, :, :].clone()
    full_mask = torch.concatenate([ctx_mask, tm], axis=-1)
    scores = scores + (1.0 - full_mask) * -1000000000.0
    p = _softmax(scores, axis=-1)
    return torch.einsum('bhqk,bhkd->bhqd', p, v)
```

```python
import sys, math, struct
KN = "standalone__tree_speculative_verify_tree_attention_over_candidate_token_tree__sampling_kernel"
HDR = open("standalone__tree_speculative_verify_tree_attention_over_candidate_token_tree__sampling.s.ref").read().split("; Override launch")[0]

def f2u(x): return struct.unpack("<I", struct.pack("<f", x))[0]

class Gen:
    def __init__(self): self.L = []; self.q = []
    def A(self, s): self.L.append(s)
    def vm(self, s, tag): self.L.append("  " + s); self.q.append(tag)
    def wait(self, *tags):
        idx = max(i for i, t in enumerate(self.q) if t in tags) if any(t in self.q for t in tags) else -1
        if idx < 0: return
        n = len(self.q) - 1 - idx
        assert n <= 63
        self.A(f"  s_waitcnt vmcnt({n})")
        self.q = self.q[idx+1:]

def gen(name, D=7, stamps=False, ldflags=" nt", wgmap="sp", spin=0):
    g = Gen(); A = g.A
    R = D + 2
    C = math.log2(math.e) / math.sqrt(128.0)
    vLane, vK, vV = 1, 2, 3
    T0 = 4
    P = 8
    Q0, Q1 = 12, 16
    vQT, vKT, vVT, vST, vFL = 20, 22, 24, 28, 29
    vM, vL, vNM = 30, 31, 32
    vLW, vLR, vMsg, vIn, vOut, vML = 33, 34, 35, 36, 37, 38
    vFS = 39
    Z0, Z1 = 40, 44
    RING = 48
    assert RING + 4*R <= 96
    D0, D1 = 96, 112
    S = 128
    T = 192
    ACC = 224
    WSTR = 8*528
    MLB = 4*WSTR
    LDS = MLB + 256
    def st(k):
        if stamps: A(f"  s_memrealtime s[{70+2*k}:{71+2*k}]")
    A(HDR.rstrip("\n"))
    A(f"; @launch grid=(256,1,1) block=(256,1,1) lds={LDS}")
    A('.amdgcn_target "amdgcn-amd-amdhsa--gfx950"\n.text')
    A(f".globl {KN}\n.p2align 8\n.type {KN},@function\n{KN}:")
    A("  s_cmp_ge_u32 s2, 256\n  s_cbranch_scc1 L_end")
    A("  s_load_dwordx16 s[4:19], s[0:1], 0\n  s_load_dwordx2 s[20:21], s[0:1], 64")
    st(0)
    if spin: A("  s_memrealtime s[92:93]")
    if wgmap == "sp":
        A("  s_and_b32 s22, s2, 63\n  s_lshr_b32 s23, s2, 6")
    else:
        A("  s_lshr_b32 s22, s2, 2\n  s_and_b32 s23, s2, 3")
    A(f"""  v_lshrrev_b32 v4, 6, v0
  v_and_b32 v{vLane}, 63, v0
  v_readfirstlane_b32 s3, v4
  v_lshlrev_b32 v4, 12, v4                 ; wave*4096
  v_bfe_u32 v5, v0, 2, 3                   ; kq
  v_lshl_add_u32 v{vK}, v5, 8, v4
  v_bfe_u32 v5, v0, 5, 1                   ; g2
  v_lshl_add_u32 v{vK}, v5, 6, v{vK}
  v_and_b32 v6, 3, v0
  v_lshl_add_u32 v{vK}, v6, 4, v{vK}
  v_lshl_add_u32 v{vV}, v5, 8, v4          ; + g2*256
  v_bfe_u32 v6, v0, 4, 1                   ; b4
  v_lshl_add_u32 v{vV}, v6, 11, v{vV}
  v_and_b32 v6, 15, v0
  v_lshl_add_u32 v{vV}, v6, 4, v{vV}       ; V voffset = w*4096 + (8*b4+g2)*256 + i*16
  v_and_b32 v6, 7, v0
  v_lshlrev_b32 v6, 8, v6
  v_lshl_add_u32 v6, v5, 6, v6
  v_bfe_u32 v7, v0, 3, 2
  v_lshl_add_u32 v6, v7, 4, v6             ; Q voffset = h*256 + g2*64 + v'*16
  s_lshl_b32 s52, s22, 11                  ; p*2048
  v_add_u32 v6, s52, v6
  s_lshl_b32 s53, s22, 20
  s_lshl_b32 s54, s23, 18
  s_add_u32 s53, s53, s54
  s_mov_b32 s26, 0x40000
  s_mov_b32 s27, 0x20000
  s_mov_b32 s30, 0x40000
  s_mov_b32 s31, 0x20000
  s_mov_b32 s56, 0                         ; K soffset
  s_waitcnt lgkmcnt(0)
  s_add_u32 s24, s6, s53
  s_addc_u32 s25, s7, 0""")
    g.vm(f"global_load_dwordx4 v[{Q0}:{Q0+3}], v6, s[4:5]", "Q")
    g.vm(f"global_load_dwordx4 v[{Q1}:{Q1+3}], v6, s[4:5] offset:128", "Q")
    cur = {"K": 0, "V": None}
    def issue(i):
        r = RING + 4*(i % R)
        if i < 64:
            c, y, jl = i >> 2, (i >> 1) & 1, i & 1
            if cur["K"] != c:
                A(f"  s_mov_b32 s56, {c*16384}"); cur["K"] = c
            g.vm(f"buffer_load_dwordx4 v[{r}:{r+3}], v{vK}, s[24:27], s56 offen offset:{y*2048+jl*128}{ldflags}", i)
        else:
            j = i - 64; c, a = j >> 2, j & 3
            if cur["V"] != c:
                A(f"  s_mov_b32 s57, {c*16384}"); cur["V"] = c
            g.vm(f"buffer_load_dwordx4 v[{r}:{r+3}], v{vV}, s[28:31], s57 offen offset:{a*512}{ldflags}", i)
    for i in range(D): issue(i)
    A(f"""  s_add_u32 s28, s8, s53
  s_addc_u32 s29, s9, 0
  s_mov_b32 s36, s20
  s_mov_b32 s37, s21
  s_mov_b32 s38, 0x200000
  s_mov_b32 s39, 0x20000
  s_mov_b32 s40, s18
  s_mov_b32 s41, s19
  s_mov_b32 s42, 256
  s_mov_b32 s43, 0x20000
  s_mov_b32 s44, s16
  s_mov_b32 s45, s17
  s_mov_b32 s46, 0x20000
  s_mov_b32 s47, 0x20000
  s_mov_b32 s48, 0xff00ff00
  s_mov_b32 s49, 0xff00ff00
  s_mov_b32 s50, 0xffff0000
  s_mov_b32 s51, 0xffff0000
  s_mov_b32 s58, 0x00ff00ff
  s_mov_b32 s59, 0x00ff00ff
  s_mov_b32 s60, 0x05040100
  s_mov_b32 s61, 0x07060302
  s_mov_b32 s62, {f2u(C):#x}               ; log2(e)/sqrt(128)
  s_lshr_b32 s54, s22, 2                   ; b
  s_lshl_b32 s55, s54, 1
  s_and_b32 s55, s55, 0x1c
  s_load_dword s63, s[14:15], s55
  s_lshl_b32 s64, s22, 2
  s_add_u32 s65, s64, s23                  ; 4p+s
  s_lshl_b32 s66, s65, 13
  s_cmp_eq_u32 s3, s23
  s_cselect_b32 s67, s66, 0x40000000
  s_cselect_b32 s68, s65, 0x1000
  v_lshlrev_b32 v{vIn}, 4, v{vLane}
  v_add_u32 v4, s67, v{vIn}
  v_add_u32 v{vIn}, s66, v{vIn}
  v_mov_b32 v{Z0}, -1
  v_mov_b32 v{Z0+1}, -1
  v_mov_b32 v{Z0+2}, -1
  v_mov_b32 v{Z0+3}, -1
  v_add_u32 v5, 0x1000, v4""")
    for k in range(4):
        g.vm(f"buffer_store_dwordx4 v[{Z0}:{Z0+3}], v4, s[36:39], 0 offen offset:{k*1024} sc1", "CLR")
    g.vm(f"buffer_store_dwordx4 v[{Z0}:{Z0+3}], v5, s[36:39], 0 offen sc1", "CLR")
    A(f"""  v_mov_b32 v{vFS}, 0x1000
  v_mov_b32 v5, s68
  v_cmp_eq_u32 vcc, 0, v{vLane}
  s_lshl_b32 s69, s3, 1                    ; 2w
  v_lshrrev_b32 v6, 5, v{vLane}            ; hh
  v_cndmask_b32 v{vFS}, v{vFS}, v5, vcc
  v_add_u32 v6, s69, v6
  v_and_b32 v7, 31, v{vLane}
  v_lshlrev_b32 v7, 3, v7                  ; (l&31)*8
  v_lshl_add_u32 v4, v6, 8, v7
  v_add_u32 v4, s52, v4
  s_lshl_b32 s55, s22, 8                   ; p*256
  v_add_u32 v7, s55, v7""")
    g.vm(f"global_load_dwordx2 v[{vQT}:{vQT+1}], v4, s[4:5]", "TR")
    g.vm(f"global_load_dwordx2 v[{vKT}:{vKT+1}], v7, s[10:11]", "TR")
    A(f"""  v_bfe_u32 v4, v{vLane}, 3, 2             ; g
  v_and_b32 v5, 7, v{vLane}                ; c
  v_lshlrev_b32 v7, 6, v4
  v_lshl_add_u32 v7, v5, 1, v7             ; (32g+c)*2
  v_lshl_add_u32 v{vOut}, v6, 8, v7
  v_add_u32 v{vOut}, s52, v{vOut}
  v_add_u32 v7, s55, v7""")
    for r in range(4):
        g.vm(f"global_load_ushort v{vVT+r}, v7, s[12:13] offset:{16*r}", "TR")
    A(f"""  v_mul_u32_u24 v{vLR}, 528, v6
  v_lshlrev_b32 v{vML}, 5, v6
  v_add_u32 v{vML}, {MLB}, v{vML}
  v_lshl_add_u32 v{vLR}, v4, 7, v{vLR}
  v_lshl_add_u32 v{vLR}, v5, 4, v{vLR}
  v_and_b32 v4, 15, v{vLane}
  v_mul_u32_u24 v{vLW}, 528, v4
  v_lshrrev_b32 v4, 4, v{vLane}
  v_lshl_add_u32 v{vLW}, v4, 7, v{vLW}
  s_mul_i32 s55, s3, {WSTR}
  v_add_u32 v{vLW}, s55, v{vLW}
  s_add_u32 s55, s64, s3
  s_lshl_b32 s55, s55, 13
  s_sub_u32 s66, s23, s3
  s_sub_u32 s66, s66, 1
  s_and_b32 s66, s66, 3
  s_lshl_b32 s67, s66, 10
  s_add_u32 s67, s67, s55
  s_lshl_b32 s66, s66, 9
  s_add_u32 s66, s66, s55
  s_add_u32 s66, s66, 3072
  v_mov_b32 v{vM}, 0xff800000
  v_mov_b32 v{vL}, 0""")
    def select(Dy, Z):
        for a in range(4):
            A(f"  v_cndmask_b32 v{T0}, v{Dy+4*a}, v{Dy+4*a+1}, s[48:49]")
            A(f"  v_cndmask_b32 v{T0+1}, v{Dy+4*a+2}, v{Dy+4*a+3}, s[48:49]")
            A(f"  v_cndmask_b32 v{Z+a}, v{T0}, v{T0+1}, s[50:51]")
    def finish_chunk(c):
        select(D1, Z1)
        A("  s_nop 1")
        for a in range(4): A(f"  v_permlane16_swap_b32 v{Z0+a}, v{Z1+a}")
        A("  s_nop 0")
        for a in range(4): A(f"  v_add_f32 v{Z0+a}, v{Z0+a}, v{Z1+a}")
        for a in range(4): A(f"  v_add_f32_dpp v{S+4*c+a}, v{Z0+a}, v{Z0+a} row_ror:8 row_mask:0xf bank_mask:0xf") if a else A(f"  s_nop 0\n  v_add_f32_dpp v{S+4*c+a}, v{Z0+a}, v{Z0+a} row_ror:8 row_mask:0xf bank_mask:0xf")
        A(f"  v_max3_f32 v{vM}, v{vM}, v{S+4*c}, v{S+4*c+1}")
        A(f"  v_max3_f32 v{vM}, v{vM}, v{S+4*c+2}, v{S+4*c+3}")
    def allred45(v, op):
        A(f"  v_mov_b32 v{T0}, v{v}\n  s_nop 1\n  v_permlane16_swap_b32 v{v}, v{T0}\n  s_nop 0\n  {op} v{v}, v{v}, v{T0}")
        A(f"  v_mov_b32 v{T0}, v{v}\n  s_nop 1\n  v_permlane32_swap_b32 v{v}, v{T0}\n  s_nop 0\n  {op} v{v}, v{v}, v{T0}")
    def tree():
        g.wait("TR")
        A(f"""  v_lshlrev_b32 v4, 16, v{vQT}
  v_lshlrev_b32 v5, 16, v{vKT}
  v_mul_f32 v{vST}, v4, v5
  v_and_b32 v4, 0xffff0000, v{vQT}
  v_and_b32 v5, 0xffff0000, v{vKT}
  v_fmac_f32 v{vST}, v4, v5
  v_lshlrev_b32 v4, 16, v{vQT+1}
  v_lshlrev_b32 v5, 16, v{vKT+1}
  v_fmac_f32 v{vST}, v4, v5
  v_and_b32 v4, 0xffff0000, v{vQT+1}
  v_and_b32 v5, 0xffff0000, v{vKT+1}
  v_fmac_f32 v{vST}, v4, v5""")
        for sh in (8, 4, 2, 1):
            A(f"  s_nop 1\n  v_add_f32_dpp v{vST}, v{vST}, v{vST} row_ror:{sh} row_mask:0xf bank_mask:0xf")
        A(f"  v_mov_b32 v4, v{vST}\n  s_nop 1\n  v_permlane16_swap_b32 v{vST}, v4\n  s_nop 0\n  v_add_f32 v{vST}, v{vST}, v4")
        A(f"""  s_waitcnt lgkmcnt(0)
  s_lshl_b32 s55, s63, 16
  s_and_b32 s63, s63, 0xffff0000
  s_bitcmp1_b32 s54, 0
  s_cselect_b32 s63, s63, s55
  v_sub_f32 v4, 1.0, s63
  v_mul_f32 v4, {f2u(-1.0e9*math.log2(math.e)):#x}, v4
  v_fma_f32 v{vST}, v{vST}, s62, v4""")
        for r in range(4): A(f"  v_lshlrev_b32 v{vVT+r}, 16, v{vVT+r}")
    for i in range(128):
        if i == 0: g.wait(0, "Q"); st(1)
        else: g.wait(i)
        if i == 127: st(3)
        if i + D < 128: issue(i + D)
        r = RING + 4*(i % R)
        if i == D + 1:
            assert "CLR" not in g.q
            A(f"  v_mov_b32 v{vFL}, 1")
            g.vm(f"buffer_store_byte v{vFL}, v{vFS}, s[40:43], 0 offen sc1", "FS")
        if i == 112:
            A(f"  v_mov_b32 v4, s64\n  v_lshlrev_b32 v{vFS}, 0, v4")
            g.vm(f"buffer_load_dword v{vFL}, v{vFS}, s[40:43], 0 offen sc1", "FL")
        if i < 64:
            c, y, jl = i >> 2, (i >> 1) & 1, i & 1
            Dy = D1 if y else D0
            q = Q1 if jl else Q0
            A(f"  v_mfma_f32_32x32x16_bf16 v[{Dy}:{Dy+15}], v[{r}:{r+3}], v[{q}:{q+3}], " + (f"v[{Dy}:{Dy+15}]" if jl else "0"))
            if (i & 3) == 0 and c > 0:
                A("  s_nop 9"); finish_chunk(c - 1)
            if (i & 3) == 2:
                A("  s_nop 9"); select(D0, Z0)
            if i == 21: tree()
        else:
            j = i - 64; b, e = j >> 3, j & 7
            if j == 0:
                st(2)
                A("  s_nop 11"); finish_chunk(15)
                allred45(vM, "v_max_f32")
                A(f"  v_mul_f32 v{vM}, s62, v{vM}\n  v_sub_f32 v{vNM}, 0, v{vM}")
            if e % 2 == 0:
                s0 = S + 8*b + e
                A(f"  v_fma_f32 v4, v{s0}, s62, v{vNM}\n  v_fma_f32 v5, v{s0+1}, s62, v{vNM}")
                A(f"  v_exp_f32 v4, v4\n  v_exp_f32 v5, v5\n  s_nop 0")
                A(f"  v_cvt_pk_bf16_f32 v{P+e//2}, v4, v5\n  v_add_f32 v{vL}, v{vL}, v4\n  v_add_f32 v{vL}, v{vL}, v5")
                if j == 62:
                    allred45(vL, "v_add_f32")
                    A(f"  v_and_b32 v4, 7, v{vLane}\n  v_lshlrev_b32 v4, 5, v4\n  s_lshl_b32 s55, s3, 3\n  s_add_u32 s55, s55, {MLB}\n  v_add_u32 v4, s55, v4")
                    A(f"  ds_write_b64 v4, v[{vM}:{vM+1}]")
            else:
                rp = RING + 4*((i-1) % R); qq = e >> 1
                for w4 in range(4):
                    A(f"  v_perm_b32 v{T+4*(2*w4)+qq}, v{r+w4}, v{rp+w4}, s60")
                    A(f"  v_perm_b32 v{T+4*(2*w4+1)+qq}, v{r+w4}, v{rp+w4}, s61")
                if e == 7:
                    A("  s_nop 1")
                    for c in range(8):
                        a = ACC + 4*c
                        A(f"  v_mfma_f32_16x16x32_bf16 v[{a}:{a+3}], v[{T+4*c}:{T+4*c+3}], v[{P}:{P+3}], " + (f"v[{a}:{a+3}]" if b else "0"))
    A("  s_nop 1\n  s_mov_b64 exec, s[58:59]")
    for c in range(8):
        A(f"  ds_write_b128 v{vLW}, v[{ACC+4*c}:{ACC+4*c+3}] offset:{16*c}")
    A("  s_mov_b64 exec, -1\n  s_waitcnt lgkmcnt(0)\n  s_barrier")
    X = D0
    A(f"  ds_read_b128 v[{X+16}:{X+19}], v{vML}\n  ds_read_b128 v[{X+20}:{X+23}], v{vML} offset:16")
    for wv in range(4):
        A(f"  ds_read_b128 v[{X+4*wv}:{X+4*wv+3}], v{vLR} offset:{wv*WSTR}")
    st(4)
    m = [X+16, X+18, X+20, X+22]; l = [X+17, X+19, X+21, X+23]
    O = S
    A("  s_waitcnt lgkmcnt(0)" if stamps else "  s_waitcnt lgkmcnt(4)")
    A(f"  v_max3_f32 v{O+4}, v{m[0]}, v{m[1]}, v{m[2]}\n  v_max_f32 v{O+4}, v{O+4}, v{m[3]}")
    for k in range(4): A(f"  v_sub_f32 v{m[k]}, v{m[k]}, v{O+4}")
    for k in range(4): A(f"  v_exp_f32 v{m[k]}, v{m[k]}")
    A(f"  s_nop 0\n  v_mul_f32 v{O+5}, v{m[0]}, v{l[0]}")
    for k in range(1, 4): A(f"  v_fmac_f32 v{O+5}, v{m[k]}, v{l[k]}")
    A("  s_waitcnt lgkmcnt(0)")
    for r in range(4): A(f"  v_mul_f32 v{O+r}, v{m[0]}, v{X+r}")
    for k in range(1, 4):
        for r in range(4): A(f"  v_fmac_f32 v{O+r}, v{m[k]}, v{X+4*k+r}")
    A("  s_cmp_eq_u32 s3, s23\n  s_cbranch_scc1 L_owner")
    g.wait("FL")
    A(f"""  s_lshl_b32 s55, s3, 3
  s_mov_b32 s69, 0
L_flag:
  v_readfirstlane_b32 s63, v{vFL}
  s_nop 1
  s_lshr_b32 s63, s63, s55
  s_and_b32 s63, s63, 0xff
  s_cbranch_scc1 L_send
  s_add_u32 s69, s69, 1
  s_cmp_ge_u32 s69, 0x40000
  s_cbranch_scc1 L_end
  buffer_load_dword v{vFL}, v{vFS}, s[40:43], 0 offen sc1
  s_waitcnt vmcnt(0)
  s_branch L_flag
L_send:""")
    for r in range(6): A(f"  v_min_u32 v{O+r}, -2, v{O+r}")
    A(f"""  v_lshlrev_b32 v4, 4, v{vLane}
  v_lshlrev_b32 v5, 3, v{vLane}
  buffer_store_dwordx4 v[{O}:{O+3}], v4, s[36:39], s67 offen sc1
  buffer_store_dwordx2 v[{O+4}:{O+5}], v5, s[36:39], s66 offen sc1""")
    if stamps: A("  s_branch L_stamp")
    else: A("  s_endpgm")
    Y = T
    A(f"""L_owner:
  v_lshlrev_b32 v5, 3, v{vLane}
  s_lshl_b32 s55, s65, 13
  s_add_u32 s55, s55, 3072
  s_mov_b32 s69, 0
L_poll:
  buffer_load_dwordx4 v[{Y}:{Y+3}], v{vIn}, s[36:39], 0 offen sc1
  buffer_load_dwordx4 v[{Y+4}:{Y+7}], v{vIn}, s[36:39], 0 offen offset:1024 sc1
  buffer_load_dwordx4 v[{Y+8}:{Y+11}], v{vIn}, s[36:39], 0 offen offset:2048 sc1
  buffer_load_dwordx2 v[{Y+12}:{Y+13}], v5, s[36:39], s55 offen sc1
  buffer_load_dwordx2 v[{Y+14}:{Y+15}], v5, s[36:39], s55 offen offset:512 sc1
  buffer_load_dwordx2 v[{Y+16}:{Y+17}], v5, s[36:39], s55 offen offset:1024 sc1
  s_add_u32 s69, s69, 1
  s_waitcnt vmcnt(0)
  v_max3_u32 v4, v{Y}, v{Y+1}, v{Y+2}""")
    for k in range(3, 17, 2): A(f"  v_max3_u32 v4, v4, v{Y+k}, v{Y+k+1}")
    A(f"""  v_max_u32 v4, v4, v{Y+17}
  v_cmp_eq_u32 vcc, -1, v4
  s_cmp_ge_u32 s69, 0x40000
  s_cbranch_scc1 L_end
  s_cbranch_vccnz L_poll""")
    st(5)
    mm = [O+4, Y+12, Y+14, Y+16]; ll = [O+5, Y+13, Y+15, Y+17]; oo = [O, Y, Y+4, Y+8]
    A(f"  v_max3_f32 v4, v{mm[0]}, v{mm[1]}, v{mm[2]}\n  v_max3_f32 v4, v4, v{mm[3]}, v{vST}")
    for k in range(4): A(f"  v_sub_f32 v{mm[k]}, v{mm[k]}, v4")
    A(f"  v_sub_f32 v{vST}, v{vST}, v4")
    for k in range(4): A(f"  v_exp_f32 v{mm[k]}, v{mm[k]}")
    A(f"  v_exp_f32 v{vST}, v{vST}\n  s_nop 0")
    A(f"  v_fma_f32 v6, v{mm[0]}, v{ll[0]}, v{vST}")
    for k in range(1, 4): A(f"  v_fmac_f32 v6, v{mm[k]}, v{ll[k]}")
    A("  v_rcp_f32 v6, v6")
    for r in range(4): A(f"  v_mul_f32 v{vVT+r}, v{vST}, v{vVT+r}")
    for k in range(4):
        for r in range(4): A(f"  v_fmac_f32 v{vVT+r}, v{mm[k]}, v{oo[k]+r}")
    for r in range(4): A(f"  v_mul_f32 v{vVT+r}, v6, v{vVT+r}")
    A(f"""  v_cvt_pk_bf16_f32 v4, v{vVT}, v{vVT+1}
  v_cvt_pk_bf16_f32 v5, v{vVT+2}, v{vVT+3}
  buffer_store_short v4, v{vOut}, s[44:47], 0 offen
  buffer_store_short_d16_hi v4, v{vOut}, s[44:47], 0 offen offset:16
  buffer_store_short v5, v{vOut}, s[44:47], 0 offen offset:32
  buffer_store_short_d16_hi v5, v{vOut}, s[44:47], 0 offen offset:48""")
    if spin:
        A(f"""  s_cmp_lg_u32 s2, 0
  s_cbranch_scc1 L_end
  s_add_u32 s92, s92, {spin*100}
L_spin:
  s_memrealtime s[94:95]
  s_waitcnt lgkmcnt(0)
  s_sub_u32 s94, s94, s92
  s_cmp_lt_i32 s94, 0
  s_cbranch_scc1 L_spin""")
    if stamps:
        A("L_stamp:\n  s_waitcnt vmcnt(0)")
        st(6)
        A(f"""  s_waitcnt lgkmcnt(0)
  v_cmp_eq_u32 vcc, 0, v{vLane}
  s_and_saveexec_b64 s[90:91], vcc
  s_cbranch_execz L_end
  s_lshl_b32 s55, s2, 2
  s_add_u32 s55, s55, s3
  s_lshl_b32 s55, s55, 6
  s_add_u32 s55, s55, 0x8000000
  v_mov_b32 v1, s55""")
        order = [0, 3, 6, 1, 2, 4, 5]
        for slot, k in enumerate(order):
            A(f"  v_mov_b32 v4, s{70+2*k}\n  v_mov_b32 v5, s{71+2*k}\n  global_store_dwordx2 v1, v[4:5], s[20:21] offset:{8*slot}\n  s_nop 1")
        A("  s_getreg_b32 s55, hwreg(HW_REG_XCC_ID)\n  s_getreg_b32 s63, hwreg(HW_REG_HW_ID)\n  v_mov_b32 v4, s55\n  v_mov_b32 v5, s63\n  global_store_dwordx2 v1, v[4:5], s[20:21] offset:56")
    A("L_end:\n  s_endpgm")
    A(f""".section .rodata,"a"
.p2align 6
.amdhsa_kernel {KN}
  .amdhsa_next_free_vgpr 256
  .amdhsa_next_free_sgpr 96
  .amdhsa_accum_offset 256
  .amdhsa_group_segment_fixed_size 0
  .amdhsa_kernarg_size 72
  .amdhsa_user_sgpr_count 2
  .amdhsa_user_sgpr_kernarg_segment_ptr 1
  .amdhsa_system_sgpr_workgroup_id_x 1
  .amdhsa_float_denorm_mode_32 3
.end_amdhsa_kernel""")
    open(name + ".s", "w").write("\n".join(g.L) + "\n")

if __name__ == "__main__":
    gen("v1_d7", D=7)
    gen("v1_spin50", D=7, spin=50)
    gen("v1_spin60", D=7, spin=60)
    gen("v1_d5", D=5)
    gen("v1_d6", D=6)
```
